```python
import torch

def _softmax(x, axis=-1):
    return torch.softmax(x, dim=axis)

def _gelu(x):
    return torch.nn.functional.gelu(x, approximate='tanh')

def _silu(x):
    return torch.nn.functional.silu(x)

def _sigmoid(x):
    return torch.sigmoid(x)

def _layernorm(x, axis=-1, eps=1e-05):
    m = x.mean(dim=axis, keepdim=True)
    v = x.var(dim=axis, keepdim=True, unbiased=False)
    return (x - m) / torch.sqrt(v + eps)

def _scatter_add(tgt, idx, src, axis=0):
    return tgt.clone().index_add_(axis, idx, src)

def _segment_sum(src, seg, n):
    out = torch.zeros((n,) + src.shape[1:], dtype=src.dtype)
    return out.index_add_(0, seg, src)

def _pad(x, pw):
    flat = tuple((v for pair in reversed(pw) for v in pair))
    return torch.nn.functional.pad(x, flat)
kernel_name = 'standalone__tensor_product_equiv_equiformer__graph'

def setup_inputs():

    _w = lambda a: (lambda t: t.to(torch.bfloat16) if t.is_floating_point() else t)(torch.as_tensor(a))
    N, deg, C, De = (10000, 64, 64, max(16, 1))
    E = N * deg
    src = (lambda lo, hi, *s: torch.randint(lo, hi, s))(0, N, E).to(torch.int64)
    dst = (lambda lo, hi, *s: torch.randint(lo, hi, s))(0, N, E).to(torch.int64)
    rvec = (lambda *s: torch.randn(*s, dtype=torch.bfloat16) * 0.05)(E, 3).to(float)
    rn = (torch.linalg.norm(rvec, dim=-1, keepdim=True) + 1e-06).to(float)
    rhat = (rvec / rn).to(float)
    eps = torch.zeros((3, 3, 3), dtype=float)
    eps[0, 1, 2] = eps[1, 2, 0] = eps[2, 0, 1] = 1.0
    eps[0, 2, 1] = eps[2, 1, 0] = eps[1, 0, 2] = -1.0
    return {'x': _w((lambda *s: torch.randn(*s, dtype=torch.bfloat16) * 0.2)(N, 4 * C).to(float)), 'rhat': _w(rhat), 'e_attr': _w((lambda *s: torch.randn(*s, dtype=torch.bfloat16) * 0.2)(E, De).to(float)), 'src': _w(src), 'dst': _w(dst), 'w_rad': _w((lambda *s: torch.randn(*s, dtype=torch.bfloat16) * 0.2)(De, 5 * C).to(float)), 'w_si0': _w((lambda *s: torch.randn(*s, dtype=torch.bfloat16) * 0.2)(2 * C, C).to(float)), 'w_si1': _w((lambda *s: torch.randn(*s, dtype=torch.bfloat16) * 0.05)(3 * C, C).to(float)), 'cg_eps': _w(eps)}

def reference(x, rhat, e_attr, src, dst, w_rad, w_si0, w_si1, cg_eps):
    N = x.shape[0]
    C = w_si0.shape[1]
    E = rhat.shape[0]
    x0 = x[:, :C].clone()
    x1 = x[:, C:].reshape(N, 3, C)
    R = (e_attr @ w_rad).reshape(E, 5, C)
    f0 = x0[src]
    f1 = x1[src]
    Y1 = rhat
    p00_0 = f0 * R[:, 0, :]
    p11_0 = torch.einsum('ejc,ej->ec', f1, Y1) * R[:, 1, :]
    p01_1 = torch.einsum('ec,ej->ejc', f0, Y1) * R[:, 2, :][:, None, :]
    p10_1 = f1 * R[:, 3, :][:, None, :]
    p11_1 = torch.einsum('ijk,ekc,ej->eic', cg_eps, f1, Y1) * R[:, 4, :][:, None, :]
    m0 = torch.concatenate([p00_0, p11_0], axis=-1) @ w_si0
    m1 = torch.einsum('ejp,pc->ejc', torch.concatenate([p01_1, p10_1, p11_1], axis=-1), w_si1)
    agg0 = _segment_sum(m0, dst, N)
    agg1 = _segment_sum(m1.reshape(E, 3 * C), dst, N).reshape(N, 3, C)
    gate = _sigmoid(agg0)
    out1 = agg1 * gate[:, None, :]
    return torch.concatenate([agg0, out1.reshape(N, 3 * C)], axis=-1)
```

```python
import sys
N=10000; E=640000; G=64; CH=E//G
HIST_OFF=0
TOT_OFF=2560000
RP_OFF=2621440
WR_OFF=2752512
WF0_OFF=WR_OFF+10240
WF1_OFF=WF0_OFF+16384
REC_OFF=4194304
WS_SIZE=268435456
ROWB=1424

out=[]
def e(s): out.append("    "+s)
def lab(s): out.append(s+":")
def srd(d, base, nbytes):
    e(f"s_mov_b32 s{d}, s{base}"); e(f"s_and_b32 s{d+1}, s{base+1}, 0xffff")
    e(f"s_mov_b32 s{d+2}, {nbytes}"); e(f"s_mov_b32 s{d+3}, 0x00020000")
def kstart(name):
    out.append(".p2align 8"); out.append(f".globl {name}"); out.append(f".type {name},@function"); lab(name)
def kdesc(name, vg, sg=102):
    return f""".amdhsa_kernel {name}
  .amdhsa_next_free_vgpr {vg}
  .amdhsa_next_free_sgpr {sg}
  .amdhsa_accum_offset {(vg+3)//4*4}
  .amdhsa_group_segment_fixed_size 0
  .amdhsa_kernarg_size 96
  .amdhsa_user_sgpr_count 2
  .amdhsa_user_sgpr_kernarg_segment_ptr 1
  .amdhsa_system_sgpr_workgroup_id_x 1
.end_amdhsa_kernel
"""

hdr = """; Kernarg layout (96 bytes): x@0 rhat@8 e_attr@16 src@24 dst@32 w_rad@40 w_si0@48 w_si1@56 cg@64 out@72 dbg@80 ws@88
; @launch kernel=hist_kernel grid=(64,1,1) block=(1024,1,1) lds=40000
; @launch kernel=scan_kernel grid=(14,1,1) block=(1024,1,1) lds=0
; @launch kernel=scatter_kernel grid=(64,1,1) block=(1024,1,1) lds=40448
; @launch kernel=main_kernel grid=(625,1,1) block=(256,1,1) lds=22784
.amdgcn_target "amdgcn-amd-amdhsa--gfx950"
.text
"""
kstart("hist_kernel")
e("s_cmp_ge_u32 s2, 64"); e("s_cbranch_scc1 L_hist_end")
e("s_load_dwordx2 s[4:5], s[0:1], 32"); e("s_load_dwordx2 s[6:7], s[0:1], 88")
e("v_lshlrev_b32 v1, 2, v0"); e("v_mov_b32 v2, 0")
for i in range(9): e(f"ds_write_b32 v1, v2 offset:{i*4096}")
e("v_cmp_gt_u32 vcc, 784, v0"); e("s_and_saveexec_b64 s[20:21], vcc")
e(f"ds_write_b32 v1, v2 offset:{9*4096}")
e("s_mov_b64 exec, s[20:21]")
e("s_waitcnt lgkmcnt(0)")
srd(8,4,E*4); srd(12,6,WS_SIZE)
e("s_barrier")
e(f"s_mul_i32 s3, s2, {CH*4}")
e("v_add_u32 v3, s3, v1")
for i in range(10):
    e(f"s_mov_b32 s16, {i*4096}")
    e(f"buffer_load_dword v{10+i}, v3, s[8:11], s16 offen")
e("v_mov_b32 v4, 1")
e("s_waitcnt vmcnt(0)")
for i in range(10):
    if i==9:
        e("v_cmp_gt_u32 vcc, 784, v0"); e("s_and_saveexec_b64 s[20:21], vcc")
    e(f"v_lshlrev_b32 v5, 2, v{10+i}")
    e(f"ds_add_u32 v5, v4")
e("s_mov_b64 exec, s[20:21]")
e("s_waitcnt lgkmcnt(0)"); e("s_barrier")
for i in range(10):
    if i==9:
        e("v_cmp_gt_u32 vcc, 784, v0"); e("s_and_saveexec_b64 s[20:21], vcc")
    e(f"ds_read_b32 v{10+i}, v1 offset:{i*4096}")
e("s_mov_b64 exec, s[20:21]")
e("s_waitcnt lgkmcnt(0)")
e(f"s_mul_i32 s3, s2, {N*4}")
e(f"s_add_u32 s3, s3, {HIST_OFF}")
e("v_add_u32 v3, s3, v1")
for i in range(10):
    if i==9:
        e("v_cmp_gt_u32 vcc, 784, v0"); e("s_and_saveexec_b64 s[20:21], vcc")
    e(f"s_mov_b32 s16, {i*4096}")
    e(f"buffer_store_dword v{10+i}, v3, s[12:15], s16 offen")
lab("L_hist_end"); e("s_endpgm")

kstart("scan_kernel")
e("s_cmp_ge_u32 s2, 14"); e("s_cbranch_scc1 L_scan_end")
e("s_load_dwordx2 s[6:7], s[0:1], 88")
e("s_load_dwordx2 s[24:25], s[0:1], 40"); e("s_load_dwordx2 s[26:27], s[0:1], 48"); e("s_load_dwordx2 s[28:29], s[0:1], 56")
e("s_waitcnt lgkmcnt(0)")
srd(12,6,WS_SIZE)
e("s_cmp_ge_u32 s2, 10"); e("s_cbranch_scc1 L_prep")
e("s_lshl_b32 s3, s2, 10"); e("v_add_u32 v1, s3, v0")
e(f"v_cmp_gt_u32 vcc, {N}, v1"); e("s_and_saveexec_b64 s[20:21], vcc"); e("s_cbranch_execz L_scan_end")
e("v_lshlrev_b32 v1, 2, v1")
for g in range(G):
    e(f"s_mov_b32 s16, {HIST_OFF+g*N*4}")
    e(f"buffer_load_dword v{10+g}, v1, s[12:15], s16 offen")
e("v_mov_b32 v2, 0")
e("s_waitcnt vmcnt(0)")
for g in range(G):
    e(f"s_mov_b32 s16, {HIST_OFF+g*N*4}")
    e(f"buffer_store_dword v2, v1, s[12:15], s16 offen")
    e(f"v_add_u32 v2, v2, v{10+g}")
e(f"s_mov_b32 s16, {TOT_OFF}")
e(f"buffer_store_dword v2, v1, s[12:15], s16 offen")
e("s_endpgm")
lab("L_prep")
e("s_cmp_eq_u32 s2, 10"); e("s_cbranch_scc1 L_prep_wr")
e("s_sub_u32 s3, s2, 11"); e("s_lshl_b32 s3, s3, 10"); e("v_add_u32 v1, s3, v0")
e("v_cmp_gt_u32 vcc, 2560, v1"); e("s_and_saveexec_b64 s[20:21], vcc"); e("s_cbranch_execz L_scan_end")
e("v_lshrrev_b32 v2, 6, v1")
e("v_and_b32 v3, 63, v1")
e("v_cmp_gt_u32 vcc, 16, v2")
e("v_subrev_u32 v4, 16, v2")
e("v_cndmask_b32 v4, v4, v2, vcc")
e("v_lshrrev_b32 v5, 2, v4")
e("v_and_b32 v6, 3, v4")
e("v_mul_u32_u24 v7, 43, v4"); e("v_lshrrev_b32 v7, 8, v7")
e("v_mul_u32_u24 v8, 6, v7"); e("v_sub_u32 v8, v4, v8")
e("v_cndmask_b32 v5, v7, v5, vcc"); e("v_cndmask_b32 v6, v8, v6, vcc")
e("v_lshrrev_b32 v7, 4, v3"); e("v_lshlrev_b32 v7, 3, v7"); e("v_lshl_add_u32 v7, v6, 5, v7")
e("v_and_b32 v8, 15, v3"); e("v_lshl_add_u32 v8, v5, 4, v8")
e("v_lshl_add_u32 v9, v7, 6, v8"); e("v_lshlrev_b32 v9, 1, v9")
srd(32,26,128*64*2); srd(36,28,192*64*2)
e("s_and_saveexec_b64 s[22:23], vcc")
for i in range(8): e(f"buffer_load_ushort v{20+i}, v9, s[32:35], 0 offen offset:{i*128}")
e("s_xor_b64 exec, exec, s[22:23]")
for i in range(8): e(f"buffer_load_ushort v{20+i}, v9, s[36:39], 0 offen offset:{i*128}")
e("s_mov_b64 exec, s[22:23]")
e("s_waitcnt vmcnt(0)")
for i in range(4): e(f"v_lshl_or_b32 v{30+i}, v{21+2*i}, 16, v{20+2*i}")
e("v_lshlrev_b32 v9, 4, v1")
e(f"s_mov_b32 s16, {WF0_OFF}")
e("buffer_store_dwordx4 v[30:33], v9, s[12:15], s16 offen")
e("s_endpgm")
lab("L_prep_wr")
srd(32,24,16*320*2)
for it in range(2):
    e(f"v_add_u32 v1, {it*1024}, v0")
    if it==1:
        e("v_cmp_gt_u32 vcc, 1280, v1"); e("s_and_saveexec_b64 s[20:21], vcc")
    e("v_lshrrev_b32 v2, 6, v1"); e("v_and_b32 v3, 63, v1")
    e("v_lshrrev_b32 v4, 2, v2"); e("v_and_b32 v5, 3, v2")
    e("v_and_b32 v6, 15, v3"); e("v_lshrrev_b32 v7, 4, v3")
    e("v_lshlrev_b32 v8, 6, v4"); e("v_lshl_add_u32 v8, v6, 2, v8"); e("v_add_u32 v8, v8, v5")
    e("v_mul_u32_u24 v9, 1280, v7"); e("v_add_u32 v9, v9, v8"); e("v_lshlrev_b32 v9, 1, v9")
    for i in range(4): e(f"buffer_load_ushort v{20+i}, v9, s[32:35], 0 offen offset:{i*640}")
    e("s_waitcnt vmcnt(0)")
    e("v_lshl_or_b32 v30, v21, 16, v20"); e("v_lshl_or_b32 v31, v23, 16, v22")
    e("v_lshlrev_b32 v9, 3, v1")
    e(f"s_mov_b32 s16, {WR_OFF}")
    e("buffer_store_dwordx2 v[30:31], v9, s[12:15], s16 offen")
lab("L_scan_end"); e("s_endpgm")

kstart("scatter_kernel")
e("s_cmp_ge_u32 s2, 64"); e("s_cbranch_scc1 L_sc_end")
e("s_load_dwordx2 s[4:5], s[0:1], 32"); e("s_load_dwordx2 s[6:7], s[0:1], 88")
e("s_load_dwordx2 s[24:25], s[0:1], 24"); e("s_load_dwordx2 s[26:27], s[0:1], 8")
e("s_waitcnt lgkmcnt(0)")
srd(8,4,E*4); srd(12,6,WS_SIZE); srd(28,24,E*4); srd(32,26,E*6)
e("v_mul_u32_u24 v1, 40, v0")
e("v_mov_b32 v40, 0")
for i in range(10): e(f"v_mov_b32 v{10+i}, 0"); e(f"v_mov_b32 v{20+i}, 0")
e("v_cmp_gt_u32 vcc, 1000, v0"); e("s_and_saveexec_b64 s[20:21], vcc")
e(f"s_mov_b32 s16, {TOT_OFF}")
e(f"s_mul_i32 s17, s2, {N*4}"); e(f"s_add_u32 s17, s17, {HIST_OFF}")
for i in range(10):
    e(f"buffer_load_dword v{10+i}, v1, s[12:15], s16 offen offset:{i*4}")
    e(f"buffer_load_dword v{20+i}, v1, s[12:15], s17 offen offset:{i*4}")
e("s_mov_b64 exec, s[20:21]")
e("s_waitcnt vmcnt(0)")
for i in range(10):
    e(f"v_mov_b32 v{30+i}, v40"); e(f"v_add_u32 v40, v40, v{10+i}")
e("v_mov_b32 v41, v40")
for sh in (1,2,4,8):
    e("v_mov_b32 v42, 0"); e("s_nop 1")
    e(f"v_mov_b32_dpp v42, v41 row_shr:{sh} row_mask:0xf bank_mask:0xf")
    e("v_add_u32 v41, v41, v42")
e("v_mov_b32 v42, 0"); e("s_nop 1")
e("v_mov_b32_dpp v42, v41 row_bcast:15 row_mask:0xa bank_mask:0xf")
e("v_add_u32 v41, v41, v42")
e("v_mov_b32 v42, 0"); e("s_nop 1")
e("v_mov_b32_dpp v42, v41 row_bcast:31 row_mask:0xc bank_mask:0xf")
e("v_add_u32 v41, v41, v42")
e("v_lshrrev_b32 v43, 6, v0"); e("v_lshlrev_b32 v43, 2, v43")
e("v_and_b32 v44, 63, v0")
e("v_cmp_eq_u32 vcc, 63, v44"); e("s_and_saveexec_b64 s[20:21], vcc")
e("ds_write_b32 v43, v41 offset:40000")
e("s_mov_b64 exec, s[20:21]")
e("s_waitcnt lgkmcnt(0)"); e("s_barrier")
e("v_mov_b32 v45, 0")
for w in range(16):
    e(f"v_mov_b32 v47, {40000+4*w}")
    e(f"ds_read_b32 v{50+w}, v47")
e("s_waitcnt lgkmcnt(0)")
e("v_lshrrev_b32 v46, 6, v0")
for w in range(16):
    e(f"v_cmp_lt_u32 vcc, {w}, v46"); e("s_nop 1")
    e(f"v_cndmask_b32 v47, 0, v{50+w}, vcc"); e("v_add_u32 v45, v45, v47")
e("v_add_u32 v45, v45, v41"); e("v_sub_u32 v45, v45, v40")
e("v_cmp_gt_u32 vcc, 1000, v0"); e("s_and_saveexec_b64 s[20:21], vcc")
for i in range(10):
    e(f"v_add_u32 v{30+i}, v{30+i}, v45")
    e(f"v_add_u32 v47, v{30+i}, v{20+i}")
    e(f"ds_write_b32 v1, v47 offset:{i*4}")
e("s_cmp_lg_u32 s2, 0"); e("s_cbranch_scc1 L_sc_norp")
e(f"s_mov_b32 s16, {RP_OFF}")
for i in range(10): e(f"buffer_store_dword v{30+i}, v1, s[12:15], s16 offen offset:{i*4}")
e(f"v_mov_b32 v47, {E}"); e(f"v_mov_b32 v48, {N*4}")
e("buffer_store_dword v47, v48, s[12:15], s16 offen")
lab("L_sc_norp")
e("s_mov_b64 exec, s[20:21]")
e("s_waitcnt lgkmcnt(0)"); e("s_barrier")
e(f"s_mul_i32 s3, s2, {CH}"); e("v_add_u32 v2, s3, v0")
e("v_mov_b32 v4, 1")
for i in range(10):
    if i==9:
        e("v_cmp_gt_u32 vcc, 784, v0"); e("s_and_saveexec_b64 s[20:21], vcc")
    e(f"v_add_u32 v5, {i*1024}, v2")
    e("v_lshlrev_b32 v6, 2, v5")
    e("buffer_load_dword v7, v6, s[8:11], 0 offen")
    e("buffer_load_dword v60, v6, s[28:31], 0 offen")
    e("v_mul_u32_u24 v8, 6, v5")
    e("buffer_load_ushort v9, v8, s[32:35], 0 offen")
    e("buffer_load_ushort v10, v8, s[32:35], 0 offen offset:2")
    e("buffer_load_ushort v63, v8, s[32:35], 0 offen offset:4")
    e("s_waitcnt vmcnt(0)")
    e("v_lshlrev_b32 v7, 2, v7")
    e("ds_add_rtn_u32 v11, v7, v4")
    e("v_mov_b32 v61, v5")
    e("v_lshl_or_b32 v62, v10, 16, v9")
    e("s_waitcnt lgkmcnt(0)")
    e("v_lshlrev_b32 v11, 4, v11")
    e(f"s_mov_b32 s16, {REC_OFF}")
    e("buffer_store_dwordx4 v[60:63], v11, s[12:15], s16 offen")
lab("L_sc_end"); e("s_endpgm")

kstart("main_kernel")
e("s_cmp_ge_u32 s2, 625"); e("s_cbranch_scc1 L_m_end")
e("s_load_dwordx2 s[4:5], s[0:1], 0"); e("s_load_dwordx2 s[6:7], s[0:1], 88")
e("s_load_dwordx2 s[24:25], s[0:1], 16"); e("s_load_dwordx2 s[26:27], s[0:1], 72")
e("s_waitcnt lgkmcnt(0)")
srd(8,4,N*512); srd(12,6,WS_SIZE); srd(28,24,E*32); srd(32,26,N*512)
e("v_and_b32 v1, 63, v0")
e("v_lshrrev_b32 v2, 6, v0")
e("v_and_b32 v3, 15, v1")
e("v_lshrrev_b32 v4, 4, v1")
e("s_lshl_b32 s3, s2, 4")
e("v_lshl_add_u32 v5, v2, 2, s3")
e("v_add_u32 v6, v5, v4")
e("v_lshrrev_b32 v7, 2, v3"); e("v_add_u32 v7, v5, v7")
e(f"s_mov_b32 s16, {RP_OFF}")
e("v_lshlrev_b32 v8, 2, v6"); e("v_lshlrev_b32 v9, 2, v7")
e("buffer_load_dword v10, v8, s[12:15], s16 offen")
e("buffer_load_dword v11, v8, s[12:15], s16 offen offset:4")
e("buffer_load_dword v12, v9, s[12:15], s16 offen")
e("buffer_load_dword v13, v9, s[12:15], s16 offen offset:4")
e(f"s_mov_b32 s16, {WR_OFF}")
e("v_lshlrev_b32 v8, 3, v1")
for f in range(20):
    if f%8==0: e(f"s_mov_b32 s16, {WR_OFF+f*512}")
    e(f"buffer_load_dwordx2 v[{100+2*f}:{101+2*f}], v8, s[12:15], s16 offen offset:{(f%8)*512}")
for a in range(44): e(f"v_mov_b32 v{140+a}, 0")
e("v_and_b32 v14, 3, v1")
e("v_lshlrev_b32 v15, 3, v4")
e("v_lshlrev_b32 v16, 3, v3")
e("s_waitcnt vmcnt(0)")
e("v_add_u32 v12, v12, v14")
lab("L_m_loop")
e("v_cmp_lt_u32 vcc, v10, v11"); e("s_cbranch_vccz L_m_done")
e(f"v_min_u32 v17, {E-1}, v12"); e("v_lshlrev_b32 v17, 4, v17")
e(f"s_mov_b32 s16, {REC_OFF}")
e("buffer_load_dword v18, v17, s[12:15], s16 offen offset:4")
for r in range(4):
    e(f"v_add_u32 v17, {r}, v10"); e(f"v_min_u32 v17, {E-1}, v17"); e("v_lshlrev_b32 v17, 4, v17")
    e(f"buffer_load_dwordx4 v[{72+4*r}:{75+4*r}], v17, s[12:15], s16 offen")
e("s_waitcnt vmcnt(4)")
e("v_lshl_add_u32 v18, v18, 5, v15")
e("buffer_load_dwordx2 v[20:21], v18, s[28:31], 0 offen")
e("s_waitcnt vmcnt(1)")
for r in range(4):
    e(f"v_lshl_add_u32 v17, v{72+4*r}, 9, v16")
    for ty in range(4): e(f"buffer_load_dwordx2 v[{40+8*r+2*ty}:{41+8*r+2*ty}], v17, s[8:11], 0 offen offset:{ty*128}")
    e(f"v_lshlrev_b32 v{88+3*r}, 16, v{74+4*r}"); e(f"v_and_b32 v{89+3*r}, 0xffff0000, v{74+4*r}"); e(f"v_lshlrev_b32 v{90+3*r}, 16, v{75+4*r}")
e("s_waitcnt vmcnt(16)")
e("v_cmp_lt_u32 vcc, v12, v13"); e("s_nop 1")
e("v_cndmask_b32 v20, 0, v20, vcc"); e("v_cndmask_b32 v21, 0, v21, vcc")
e("s_nop 1")
def mf(ty,t,dst):
    f=ty*4+t
    e(f"v_mfma_f32_16x16x16_bf16 v[{dst}:{dst+3}], v[20:21], v[{100+2*f}:{101+2*f}], 0")
RB=184
for k,ty in enumerate((0,2)):
    for t in range(4): mf(ty,t,RB+16*k+4*t)
e("s_nop 7"); e("s_waitcnt vmcnt(0)")
def unp(dst,reg,t):
    if t%2==0: e(f"v_lshlrev_b32 v{dst}, 16, v{reg+t//2}")
    else: e(f"v_and_b32 v{dst}, 0xffff0000, v{reg+t//2}")
for r in range(4):
    for t in range(4):
        unp(22,40+8*r,t)
        e(f"v_fmac_f32 v{140+0*4+t}, v22, v{RB+4*t+r}")
        e(f"v_mul_f32 v23, v22, v{RB+16+4*t+r}")
        for j in range(3): e(f"v_fmac_f32 v{140+(2+j)*4+t}, v23, v{88+3*r+j}")
for k,ty in enumerate((1,3,4)):
    for t in range(4): mf(ty,t,RB+16*k+4*t)
e("s_nop 7")
for r in range(4):
    Y=[88+3*r,89+3*r,90+3*r]
    for t in range(4):
        for j in range(3): unp(22+j,40+8*r+2*(1+j),t)
        e(f"v_mul_f32 v25, v22, v{Y[0]}"); e(f"v_fmac_f32 v25, v23, v{Y[1]}"); e(f"v_fmac_f32 v25, v24, v{Y[2]}")
        e(f"v_fmac_f32 v{140+1*4+t}, v25, v{RB+4*t+r}")
        for j in range(3): e(f"v_fmac_f32 v{140+(5+j)*4+t}, v{22+j}, v{RB+16+4*t+r}")
        for i in range(3):
            a,b=(i+1)%3,(i+2)%3
            e(f"v_mul_f32 v25, v{Y[b]}, v{22+a}")
            e(f"v_fma_f32 v25, v{Y[a]}, v{22+b}, -v25")
            e(f"v_fmac_f32 v{140+(8+i)*4+t}, v25, v{RB+32+4*t+r}")
e("v_add_u32 v10, 4, v10"); e("v_add_u32 v12, 4, v12")
e("s_branch L_m_loop")
lab("L_m_done")
e("v_lshl_add_u32 v17, v2, 2, v4"); e(f"v_mul_u32_u24 v17, {ROWB}, v17"); e("v_add_u32 v17, v17, v16")
offs=[0,64,128,320,512,192,384,576,256,448,640]
for a in range(11):
    e(f"v_cvt_pk_bf16_f32 v22, v{140+4*a}, v{141+4*a}"); e(f"v_cvt_pk_bf16_f32 v23, v{142+4*a}, v{143+4*a}")
    e(f"ds_write_b64 v17, v[22:23] offset:{offs[a]*2}")
e("s_waitcnt lgkmcnt(0)"); e("s_barrier")
e(f"v_mul_u32_u24 v17, {ROWB}, v3"); e("v_lshl_add_u32 v17, v4, 4, v17")
e("v_lshlrev_b32 v18, 4, v1")
e("v_lshl_add_u32 v19, v2, 12, v18")
e("v_mul_u32_u24 v24, 6144, v2"); e("v_add_u32 v24, v24, v18")
e(f"s_mov_b32 s16, {WF0_OFF}"); e(f"s_mov_b32 s17, {WF1_OFF}")
for ks in range(4): e(f"buffer_load_dwordx4 v[{40+4*ks}:{43+4*ks}], v19, s[12:15], s16 offen offset:{ks*1024}")
for ks in range(6):
    if ks==4: e(f"s_mov_b32 s17, {WF1_OFF+4096}")
    e(f"buffer_load_dwordx4 v[{56+4*ks}:{59+4*ks}], v24, s[12:15], s17 offen offset:{(ks%4)*1024}")
for ks in range(4): e(f"ds_read_b128 v[{100+4*ks}:{103+4*ks}], v17 offset:{ks*64}")
for j in range(3):
    for ks in range(6): e(f"ds_read_b128 v[{116+24*j+4*ks}:{119+24*j+4*ks}], v17 offset:{256+384*j+ks*64}")
e("s_waitcnt vmcnt(0) lgkmcnt(0)")
for ks in range(4):
    c = "0" if ks==0 else "v[200:203]"
    e(f"v_mfma_f32_16x16x32_bf16 v[200:203], v[{40+4*ks}:{43+4*ks}], v[{100+4*ks}:{103+4*ks}], {c}")
for j in range(3):
    for ks in range(6):
        d=204+4*j
        c = "0" if ks==0 else f"v[{d}:{d+3}]"
        e(f"v_mfma_f32_16x16x32_bf16 v[{d}:{d+3}], v[{56+4*ks}:{59+4*ks}], v[{116+24*j+4*ks}:{119+24*j+4*ks}], {c}")
e("s_nop 7"); e("s_nop 7")
for r in range(4):
    e(f"v_mul_f32 v{220+r}, 0xbfb8aa3b, v{200+r}"); e(f"v_exp_f32 v{220+r}, v{220+r}"); e("s_nop 0")
    e(f"v_add_f32 v{220+r}, 1.0, v{220+r}"); e(f"v_rcp_f32 v{220+r}, v{220+r}"); e("s_nop 0")
    for j in range(3): e(f"v_mul_f32 v{204+4*j+r}, v{204+4*j+r}, v{220+r}")
e("v_add_u32 v17, s3, v3"); e("v_lshlrev_b32 v17, 9, v17")
e("v_lshl_add_u32 v17, v2, 5, v17"); e("v_lshl_add_u32 v17, v4, 3, v17")
for p in range(4):
    b=200+4*p
    e(f"v_cvt_pk_bf16_f32 v22, v{b}, v{b+1}"); e(f"v_cvt_pk_bf16_f32 v23, v{b+2}, v{b+3}")
    e(f"buffer_store_dwordx2 v[22:23], v17, s[32:35], 0 offen offset:{p*128}")
    e("s_nop 1")
lab("L_m_end"); e("s_endpgm")

txt = hdr + "\n".join(out) + "\n.section .rodata,\"a\"\n.p2align 6\n" + kdesc("hist_kernel",32)+".p2align 6\n"+kdesc("scan_kernel",80)+".p2align 6\n"+kdesc("scatter_kernel",72)+".p2align 6\n"+kdesc("main_kernel",232)
open(sys.argv[1] if len(sys.argv)>1 else "standalone__tensor_product_equiv_equiformer__graph.s","w").write(txt)
```

```python
import sys
N=10000; E=640000; G=64; CH=E//G
HIST_OFF=0
TOT_OFF=2560000
RP_OFF=2621440
WR_OFF=2752512
WF0_OFF=WR_OFF+10240
WF1_OFF=WF0_OFF+16384
REC_OFF=4194304
WS_SIZE=268435456
ROWB=1424

out=[]
def e(s): out.append("    "+s)
def lab(s): out.append(s+":")
def srd(d, base, nbytes):
    e(f"s_mov_b32 s{d}, s{base}"); e(f"s_and_b32 s{d+1}, s{base+1}, 0xffff")
    e(f"s_mov_b32 s{d+2}, {nbytes}"); e(f"s_mov_b32 s{d+3}, 0x00020000")
def kstart(name):
    out.append(".p2align 8"); out.append(f".globl {name}"); out.append(f".type {name},@function"); lab(name)
def kdesc(name, vg, sg=102):
    return f""".amdhsa_kernel {name}
  .amdhsa_next_free_vgpr {vg}
  .amdhsa_next_free_sgpr {sg}
  .amdhsa_accum_offset {(vg+3)//4*4}
  .amdhsa_group_segment_fixed_size 0
  .amdhsa_kernarg_size 96
  .amdhsa_user_sgpr_count 2
  .amdhsa_user_sgpr_kernarg_segment_ptr 1
  .amdhsa_system_sgpr_workgroup_id_x 1
.end_amdhsa_kernel
"""

hdr = """; Kernarg layout (96 bytes): x@0 rhat@8 e_attr@16 src@24 dst@32 w_rad@40 w_si0@48 w_si1@56 cg@64 out@72 dbg@80 ws@88
; @launch kernel=hist_kernel grid=(64,1,1) block=(1024,1,1) lds=40000
; @launch kernel=scan_kernel grid=(217,1,1) block=(64,1,1) lds=0
; @launch kernel=scatter_kernel grid=(64,1,1) block=(1024,1,1) lds=40448
; @launch kernel=main_kernel grid=(625,1,1) block=(256,1,1) lds=39168
.amdgcn_target "amdgcn-amd-amdhsa--gfx950"
.text
"""
kstart("hist_kernel")
e("s_cmp_ge_u32 s2, 64"); e("s_cbranch_scc1 L_hist_end")
e("s_load_dwordx2 s[4:5], s[0:1], 32"); e("s_load_dwordx2 s[6:7], s[0:1], 88")
e("v_lshlrev_b32 v1, 2, v0"); e("v_mov_b32 v2, 0")
for i in range(9): e(f"ds_write_b32 v1, v2 offset:{i*4096}")
e("v_cmp_gt_u32 vcc, 784, v0"); e("s_and_saveexec_b64 s[20:21], vcc")
e(f"ds_write_b32 v1, v2 offset:{9*4096}")
e("s_mov_b64 exec, s[20:21]")
e("s_waitcnt lgkmcnt(0)")
srd(8,4,E*4); srd(12,6,WS_SIZE)
e("s_barrier")
e(f"s_mul_i32 s3, s2, {CH*4}")
e("v_add_u32 v3, s3, v1")
for i in range(10):
    e(f"s_mov_b32 s16, {i*4096}")
    e(f"buffer_load_dword v{10+i}, v3, s[8:11], s16 offen")
e("v_mov_b32 v4, 1")
e("s_waitcnt vmcnt(0)")
for i in range(10):
    if i==9:
        e("v_cmp_gt_u32 vcc, 784, v0"); e("s_and_saveexec_b64 s[20:21], vcc")
    e(f"v_lshlrev_b32 v5, 2, v{10+i}")
    e(f"ds_add_u32 v5, v4")
e("s_mov_b64 exec, s[20:21]")
e("s_waitcnt lgkmcnt(0)"); e("s_barrier")
for i in range(10):
    if i==9:
        e("v_cmp_gt_u32 vcc, 784, v0"); e("s_and_saveexec_b64 s[20:21], vcc")
    e(f"ds_read_b32 v{10+i}, v1 offset:{i*4096}")
e("s_mov_b64 exec, s[20:21]")
e("s_waitcnt lgkmcnt(0)")
e(f"s_mul_i32 s3, s2, {N*4}")
e(f"s_add_u32 s3, s3, {HIST_OFF}")
e("v_add_u32 v3, s3, v1")
for i in range(10):
    if i==9:
        e("v_cmp_gt_u32 vcc, 784, v0"); e("s_and_saveexec_b64 s[20:21], vcc")
    e(f"s_mov_b32 s16, {i*4096}")
    e(f"buffer_store_dword v{10+i}, v3, s[12:15], s16 offen")
lab("L_hist_end"); e("s_endpgm")

kstart("scan_kernel")
e("s_cmp_ge_u32 s2, 217"); e("s_cbranch_scc1 L_scan_end")
e("s_load_dwordx2 s[6:7], s[0:1], 88")
e("s_load_dwordx2 s[24:25], s[0:1], 40"); e("s_load_dwordx2 s[26:27], s[0:1], 48"); e("s_load_dwordx2 s[28:29], s[0:1], 56")
e("s_waitcnt lgkmcnt(0)")
srd(12,6,WS_SIZE)
e("s_cmp_ge_u32 s2, 157"); e("s_cbranch_scc1 L_prep")
e("s_lshl_b32 s3, s2, 6"); e("v_add_u32 v1, s3, v0")
e(f"v_cmp_gt_u32 vcc, {N}, v1"); e("s_and_saveexec_b64 s[20:21], vcc"); e("s_cbranch_execz L_scan_end")
e("v_lshlrev_b32 v1, 2, v1")
for g in range(G):
    e(f"s_mov_b32 s16, {HIST_OFF+g*N*4}")
    e(f"buffer_load_dword v{10+g}, v1, s[12:15], s16 offen")
e("v_mov_b32 v2, 0")
e("s_waitcnt vmcnt(0)")
for g in range(G):
    e(f"s_mov_b32 s16, {HIST_OFF+g*N*4}")
    e(f"buffer_store_dword v2, v1, s[12:15], s16 offen")
    e(f"v_add_u32 v2, v2, v{10+g}")
e(f"s_mov_b32 s16, {TOT_OFF}")
e(f"buffer_store_dword v2, v1, s[12:15], s16 offen")
e("s_endpgm")
lab("L_prep")
e("s_cmp_ge_u32 s2, 197"); e("s_cbranch_scc1 L_prep_wr")
e("s_sub_u32 s3, s2, 157"); e("s_lshl_b32 s3, s3, 6"); e("v_add_u32 v1, s3, v0")
e("v_lshrrev_b32 v2, 6, v1")
e("v_and_b32 v3, 63, v1")
e("v_cmp_gt_u32 vcc, 16, v2")
e("v_subrev_u32 v4, 16, v2")
e("v_cndmask_b32 v4, v4, v2, vcc")
e("v_lshrrev_b32 v5, 2, v4"); e("v_and_b32 v6, 3, v4")
e("v_mul_u32_u24 v7, 43, v4"); e("v_lshrrev_b32 v7, 8, v7")
e("v_mul_u32_u24 v8, 6, v7"); e("v_sub_u32 v8, v4, v8")
e("v_cndmask_b32 v5, v7, v5, vcc"); e("v_cndmask_b32 v6, v8, v6, vcc")
e("v_lshrrev_b32 v7, 4, v3"); e("v_lshlrev_b32 v7, 3, v7"); e("v_lshl_add_u32 v7, v6, 5, v7")
e("v_and_b32 v8, 15, v3"); e("v_lshl_add_u32 v8, v5, 4, v8")
e("v_lshl_add_u32 v9, v7, 6, v8"); e("v_lshlrev_b32 v9, 1, v9")
srd(32,26,128*64*2); srd(36,28,192*64*2)
e("s_cmp_ge_u32 s2, 173"); e("s_cbranch_scc1 L_prep_w1")
for i in range(8): e(f"buffer_load_ushort v{20+i}, v9, s[32:35], 0 offen offset:{i*128}")
e("s_branch L_prep_st")
lab("L_prep_w1")
for i in range(8): e(f"buffer_load_ushort v{20+i}, v9, s[36:39], 0 offen offset:{i*128}")
lab("L_prep_st")
e("s_waitcnt vmcnt(0)")
for i in range(4): e(f"v_lshl_or_b32 v{30+i}, v{21+2*i}, 16, v{20+2*i}")
e("v_lshlrev_b32 v9, 4, v1")
e(f"s_mov_b32 s16, {WF0_OFF}")
e("buffer_store_dwordx4 v[30:33], v9, s[12:15], s16 offen")
e("s_endpgm")
lab("L_prep_wr")
srd(32,24,16*320*2)
e("s_sub_u32 s3, s2, 197"); e("s_lshl_b32 s3, s3, 6"); e("v_add_u32 v1, s3, v0")
e("v_lshrrev_b32 v2, 6, v1"); e("v_and_b32 v3, 63, v1")
e("v_lshrrev_b32 v4, 2, v2"); e("v_and_b32 v5, 3, v2")
e("v_and_b32 v6, 15, v3"); e("v_lshrrev_b32 v7, 4, v3")
e("v_lshlrev_b32 v8, 6, v4"); e("v_lshl_add_u32 v8, v6, 2, v8"); e("v_add_u32 v8, v8, v5")
e("v_mul_u32_u24 v9, 1280, v7"); e("v_add_u32 v9, v9, v8"); e("v_lshlrev_b32 v9, 1, v9")
for i in range(4): e(f"buffer_load_ushort v{20+i}, v9, s[32:35], 0 offen offset:{i*640}")
e("s_waitcnt vmcnt(0)")
e("v_lshl_or_b32 v30, v21, 16, v20"); e("v_lshl_or_b32 v31, v23, 16, v22")
e("v_lshlrev_b32 v9, 3, v1")
e(f"s_mov_b32 s16, {WR_OFF}")
e("buffer_store_dwordx2 v[30:31], v9, s[12:15], s16 offen")
lab("L_scan_end"); e("s_endpgm")

kstart("scatter_kernel")
e("s_cmp_ge_u32 s2, 64"); e("s_cbranch_scc1 L_sc_end")
e("s_load_dwordx2 s[4:5], s[0:1], 32"); e("s_load_dwordx2 s[6:7], s[0:1], 88")
e("s_load_dwordx2 s[24:25], s[0:1], 24"); e("s_load_dwordx2 s[26:27], s[0:1], 8")
e("s_waitcnt lgkmcnt(0)")
srd(8,4,E*4); srd(12,6,WS_SIZE); srd(28,24,E*4); srd(32,26,E*6)
e("v_mul_u32_u24 v1, 40, v0")
e("v_mov_b32 v40, 0")
for i in range(10): e(f"v_mov_b32 v{10+i}, 0"); e(f"v_mov_b32 v{20+i}, 0")
e("v_cmp_gt_u32 vcc, 1000, v0"); e("s_and_saveexec_b64 s[20:21], vcc")
e(f"s_mov_b32 s16, {TOT_OFF}")
e(f"s_mul_i32 s17, s2, {N*4}"); e(f"s_add_u32 s17, s17, {HIST_OFF}")
for i in range(10):
    e(f"buffer_load_dword v{10+i}, v1, s[12:15], s16 offen offset:{i*4}")
    e(f"buffer_load_dword v{20+i}, v1, s[12:15], s17 offen offset:{i*4}")
e("s_mov_b64 exec, s[20:21]")
e("s_waitcnt vmcnt(0)")
for i in range(10):
    e(f"v_mov_b32 v{30+i}, v40"); e(f"v_add_u32 v40, v40, v{10+i}")
e("v_mov_b32 v41, v40")
for sh in (1,2,4,8):
    e("v_mov_b32 v42, 0"); e("s_nop 1")
    e(f"v_mov_b32_dpp v42, v41 row_shr:{sh} row_mask:0xf bank_mask:0xf")
    e("v_add_u32 v41, v41, v42")
e("v_mov_b32 v42, 0"); e("s_nop 1")
e("v_mov_b32_dpp v42, v41 row_bcast:15 row_mask:0xa bank_mask:0xf")
e("v_add_u32 v41, v41, v42")
e("v_mov_b32 v42, 0"); e("s_nop 1")
e("v_mov_b32_dpp v42, v41 row_bcast:31 row_mask:0xc bank_mask:0xf")
e("v_add_u32 v41, v41, v42")
e("v_lshrrev_b32 v43, 6, v0"); e("v_lshlrev_b32 v43, 2, v43")
e("v_and_b32 v44, 63, v0")
e("v_cmp_eq_u32 vcc, 63, v44"); e("s_and_saveexec_b64 s[20:21], vcc")
e("ds_write_b32 v43, v41 offset:40000")
e("s_mov_b64 exec, s[20:21]")
e("s_waitcnt lgkmcnt(0)"); e("s_barrier")
e("v_mov_b32 v45, 0")
for w in range(16):
    e(f"v_mov_b32 v47, {40000+4*w}")
    e(f"ds_read_b32 v{50+w}, v47")
e("s_waitcnt lgkmcnt(0)")
e("v_lshrrev_b32 v46, 6, v0")
for w in range(16):
    e(f"v_cmp_lt_u32 vcc, {w}, v46"); e("s_nop 1")
    e(f"v_cndmask_b32 v47, 0, v{50+w}, vcc"); e("v_add_u32 v45, v45, v47")
e("v_add_u32 v45, v45, v41"); e("v_sub_u32 v45, v45, v40")
e("v_cmp_gt_u32 vcc, 1000, v0"); e("s_and_saveexec_b64 s[20:21], vcc")
for i in range(10):
    e(f"v_add_u32 v{30+i}, v{30+i}, v45")
    e(f"v_add_u32 v47, v{30+i}, v{20+i}")
    e(f"ds_write_b32 v1, v47 offset:{i*4}")
e("s_cmp_lg_u32 s2, 0"); e("s_cbranch_scc1 L_sc_norp")
e(f"s_mov_b32 s16, {RP_OFF}")
for i in range(10): e(f"buffer_store_dword v{30+i}, v1, s[12:15], s16 offen offset:{i*4}")
e(f"v_mov_b32 v47, {E}"); e(f"v_mov_b32 v48, {N*4}")
e("buffer_store_dword v47, v48, s[12:15], s16 offen")
lab("L_sc_norp")
e("s_mov_b64 exec, s[20:21]")
e("s_waitcnt lgkmcnt(0)"); e("s_barrier")
e(f"s_mul_i32 s3, s2, {CH}"); e("v_add_u32 v2, s3, v0")
e("v_mov_b32 v4, 1")
for i in range(10):
    if i==9:
        e("v_cmp_gt_u32 vcc, 784, v0"); e("s_and_saveexec_b64 s[20:21], vcc")
    R=66+6*i
    e(f"v_add_u32 v{R+1}, {i*1024}, v2")
    e(f"v_lshlrev_b32 v6, 2, v{R+1}")
    e(f"buffer_load_dword v{R+4}, v6, s[8:11], 0 offen")
    e(f"buffer_load_dword v{R}, v6, s[28:31], 0 offen")
    e(f"v_mul_u32_u24 v8, 6, v{R+1}")
    e(f"buffer_load_ushort v{R+2}, v8, s[32:35], 0 offen")
    e(f"buffer_load_ushort v{R+5}, v8, s[32:35], 0 offen offset:2")
    e(f"buffer_load_ushort v{R+3}, v8, s[32:35], 0 offen offset:4")
e("s_mov_b64 exec, s[20:21]")
e("s_waitcnt vmcnt(0)")
for i in range(10):
    if i==9:
        e("v_cmp_gt_u32 vcc, 784, v0"); e("s_and_saveexec_b64 s[20:21], vcc")
    R=66+6*i
    e(f"v_lshlrev_b32 v{R+4}, 2, v{R+4}")
    e(f"ds_add_rtn_u32 v{R+4}, v{R+4}, v4")
    e(f"v_lshl_or_b32 v{R+2}, v{R+5}, 16, v{R+2}")
e("s_mov_b64 exec, s[20:21]")
e("s_waitcnt lgkmcnt(0)")
e(f"s_mov_b32 s16, {REC_OFF}")
for i in range(10):
    if i==9:
        e("v_cmp_gt_u32 vcc, 784, v0"); e("s_and_saveexec_b64 s[20:21], vcc")
    R=66+6*i
    e(f"v_lshlrev_b32 v{R+4}, 4, v{R+4}")
    e(f"buffer_store_dwordx4 v[{R}:{R+3}], v{R+4}, s[12:15], s16 offen")
lab("L_sc_end"); e("s_endpgm")

kstart("main_kernel")
e("s_cmp_ge_u32 s2, 625"); e("s_cbranch_scc1 L_m_end")
e("s_load_dwordx2 s[4:5], s[0:1], 0"); e("s_load_dwordx2 s[6:7], s[0:1], 88")
e("s_load_dwordx2 s[24:25], s[0:1], 16"); e("s_load_dwordx2 s[26:27], s[0:1], 72")
e("s_waitcnt lgkmcnt(0)")
srd(8,4,N*512); srd(12,6,WS_SIZE); srd(28,24,E*32); srd(32,26,N*512)
e("v_and_b32 v1, 63, v0")
e("v_lshrrev_b32 v2, 6, v0")
e("v_and_b32 v3, 15, v1")
e("v_lshrrev_b32 v4, 4, v1")
e("s_lshl_b32 s3, s2, 4")
e("v_lshl_add_u32 v5, v2, 2, s3")
e("v_add_u32 v6, v5, v4")
e("v_lshrrev_b32 v7, 2, v3"); e("v_add_u32 v7, v5, v7")
e(f"s_mov_b32 s16, {RP_OFF}")
e("v_lshlrev_b32 v8, 2, v6"); e("v_lshlrev_b32 v9, 2, v7")
e("buffer_load_dword v10, v8, s[12:15], s16 offen")
e("buffer_load_dword v11, v8, s[12:15], s16 offen offset:4")
e("buffer_load_dword v12, v9, s[12:15], s16 offen")
e("buffer_load_dword v13, v9, s[12:15], s16 offen offset:4")
e(f"s_mov_b32 s16, {WR_OFF}")
e("v_lshlrev_b32 v8, 3, v1")
for f in range(20):
    if f%8==0: e(f"s_mov_b32 s16, {WR_OFF+f*512}")
    e(f"buffer_load_dwordx2 v[{100+2*f}:{101+2*f}], v8, s[12:15], s16 offen offset:{(f%8)*512}")
for a in range(44): e(f"v_mov_b32 v{140+a}, 0")
e("v_and_b32 v14, 3, v1")
e("v_lshlrev_b32 v15, 3, v4")
e("v_lshlrev_b32 v16, 3, v3")
e("s_waitcnt vmcnt(0)")
for q in range(4): e(f"v_readlane_b32 s{40+q}, v10, {16*q}")
e("v_lshlrev_b32 v28, 12, v2"); e("v_add_u32 v28, 22784, v28")
e("v_lshl_add_u32 v29, v1, 4, v28")
e("s_mov_b32 s44, 0")
X=[36,68]; Yb=[232,244]; EA=[20,26]; RB=184
def pf(buf):
    for r in range(4): e(f"ds_read_b128 v[{RB+4*r}:{RB+3+4*r}], v30 offset:{16*r}")
    e("ds_read_b32 v18, v31 offset:4")
    e("s_waitcnt lgkmcnt(0)")
    e("v_lshl_add_u32 v18, v18, 5, v15")
    e(f"buffer_load_dwordx2 v[{EA[buf]}:{EA[buf]+1}], v18, s[28:31], 0 offen")
    for r in range(4):
        e(f"v_lshl_add_u32 v17, v{RB+4*r}, 9, v16")
        for ty in range(4): e(f"buffer_load_dwordx2 v[{X[buf]+8*r+2*ty}:{X[buf]+1+8*r+2*ty}], v17, s[8:11], 0 offen offset:{ty*128}")
        y=Yb[buf]+3*r
        e(f"v_lshlrev_b32 v{y}, 16, v{RB+2+4*r}"); e(f"v_and_b32 v{y+1}, 0xffff0000, v{RB+2+4*r}"); e(f"v_lshlrev_b32 v{y+2}, 16, v{RB+3+4*r}")
    e("v_add_u32 v30, 64, v30"); e("v_add_u32 v31, 64, v31")
def unp(dst,reg,t):
    if t%2==0: e(f"v_lshlrev_b32 v{dst}, 16, v{reg+t//2}")
    else: e(f"v_and_b32 v{dst}, 0xffff0000, v{reg+t//2}")
def compute(buf):
    ea=EA[buf]; xb=X[buf]; yb=Yb[buf]
    e("v_cmp_lt_u32 vcc, v33, v35"); e("s_nop 1")
    e(f"v_cndmask_b32 v{ea}, 0, v{ea}, vcc"); e(f"v_cndmask_b32 v{ea+1}, 0, v{ea+1}, vcc")
    e("s_nop 1")
    def mf(ty,t,dst):
        f=ty*4+t
        e(f"v_mfma_f32_16x16x16_bf16 v[{dst}:{dst+3}], v[{ea}:{ea+1}], v[{100+2*f}:{101+2*f}], 0")
    for k,ty in enumerate((0,2)):
        for t in range(4): mf(ty,t,RB+16*k+4*t)
    e("s_nop 7")
    for r in range(4):
        for t in range(4):
            unp(22,xb+8*r,t)
            e(f"v_fmac_f32 v{140+t}, v22, v{RB+4*t+r}")
            e(f"v_mul_f32 v23, v22, v{RB+16+4*t+r}")
            for j in range(3): e(f"v_fmac_f32 v{140+(2+j)*4+t}, v23, v{yb+3*r+j}")
    for k,ty in enumerate((1,3,4)):
        for t in range(4): mf(ty,t,RB+16*k+4*t)
    e("s_nop 7")
    for r in range(4):
        Y=[yb+3*r,yb+1+3*r,yb+2+3*r]
        for t in range(4):
            for j in range(3): unp(22+j,xb+8*r+2*(1+j),t)
            e(f"v_mul_f32 v25, v22, v{Y[0]}"); e(f"v_fmac_f32 v25, v23, v{Y[1]}"); e(f"v_fmac_f32 v25, v24, v{Y[2]}")
            e(f"v_fmac_f32 v{140+4+t}, v25, v{RB+4*t+r}")
            for j in range(3): e(f"v_fmac_f32 v{140+(5+j)*4+t}, v{22+j}, v{RB+16+4*t+r}")
            for i in range(3):
                a,b=(i+1)%3,(i+2)%3
                e(f"v_mul_f32 v25, v{Y[b]}, v{22+a}")
                e(f"v_fma_f32 v25, v{Y[a]}, v{22+b}, -v25")
                e(f"v_fmac_f32 v{140+(8+i)*4+t}, v25, v{RB+32+4*t+r}")
    e("v_add_u32 v32, 4, v32"); e("v_add_u32 v33, 4, v33")
lab("L_m_chunk")
e("v_sub_u32 v34, v11, v10"); e("v_sub_u32 v35, v13, v12")
e("v_subrev_u32 v34, s44, v34"); e("v_subrev_u32 v35, s44, v35")
e("v_cmp_lt_i32 vcc, 0, v34"); e("s_cbranch_vccz L_m_done")
e("v_max_i32 v34, 0, v34"); e("v_max_i32 v35, 0, v35")
e("v_min_u32 v34, 64, v34"); e("v_min_u32 v35, 64, v35")
e(f"s_mov_b32 s16, {REC_OFF}")
for q in range(4):
    e(f"s_add_u32 s45, s{40+q}, s44"); e("v_add_u32 v17, s45, v1"); e(f"v_min_u32 v17, {E-1}, v17"); e("v_lshlrev_b32 v17, 4, v17")
    e(f"buffer_load_dwordx4 v[{RB+4*q}:{RB+3+4*q}], v17, s[12:15], s16 offen")
e("s_waitcnt vmcnt(0)")
for q in range(4): e(f"ds_write_b128 v29, v[{RB+4*q}:{RB+3+4*q}] offset:{q*1024}")
e("v_lshl_add_u32 v30, v4, 10, v28")
e("v_lshrrev_b32 v31, 2, v3"); e("v_lshl_add_u32 v31, v31, 10, v28"); e("v_lshl_add_u32 v31, v14, 4, v31")
e("v_mov_b32 v32, 0"); e("v_mov_b32 v33, v14")
e("s_waitcnt lgkmcnt(0)")
pf(0)
lab("L_m_loop")
for buf in range(2):
    e("v_cmp_lt_u32 vcc, v32, v34"); e("s_cbranch_vccz L_m_next")
    pf(1-buf)
    e("s_waitcnt vmcnt(17)")
    compute(buf)
e("s_branch L_m_loop")
lab("L_m_next")
e("s_waitcnt vmcnt(0)")
e("s_add_u32 s44, s44, 64")
e("s_branch L_m_chunk")
lab("L_m_done")
e("v_lshl_add_u32 v17, v2, 2, v4"); e(f"v_mul_u32_u24 v17, {ROWB}, v17"); e("v_add_u32 v17, v17, v16")
offs=[0,64,128,320,512,192,384,576,256,448,640]
for a in range(11):
    e(f"v_cvt_pk_bf16_f32 v22, v{140+4*a}, v{141+4*a}"); e(f"v_cvt_pk_bf16_f32 v23, v{142+4*a}, v{143+4*a}")
    e(f"ds_write_b64 v17, v[22:23] offset:{offs[a]*2}")
e("s_waitcnt lgkmcnt(0)"); e("s_barrier")
e(f"v_mul_u32_u24 v17, {ROWB}, v3"); e("v_lshl_add_u32 v17, v4, 4, v17")
e("v_lshlrev_b32 v18, 4, v1")
e("v_lshl_add_u32 v19, v2, 12, v18")
e("v_mul_u32_u24 v24, 6144, v2"); e("v_add_u32 v24, v24, v18")
e(f"s_mov_b32 s16, {WF0_OFF}"); e(f"s_mov_b32 s17, {WF1_OFF}")
for ks in range(4): e(f"buffer_load_dwordx4 v[{40+4*ks}:{43+4*ks}], v19, s[12:15], s16 offen offset:{ks*1024}")
for ks in range(6):
    if ks==4: e(f"s_mov_b32 s17, {WF1_OFF+4096}")
    e(f"buffer_load_dwordx4 v[{56+4*ks}:{59+4*ks}], v24, s[12:15], s17 offen offset:{(ks%4)*1024}")
for ks in range(4): e(f"ds_read_b128 v[{100+4*ks}:{103+4*ks}], v17 offset:{ks*64}")
for j in range(3):
    for ks in range(6): e(f"ds_read_b128 v[{116+24*j+4*ks}:{119+24*j+4*ks}], v17 offset:{256+384*j+ks*64}")
e("s_waitcnt vmcnt(0) lgkmcnt(0)")
for ks in range(4):
    c = "0" if ks==0 else "v[200:203]"
    e(f"v_mfma_f32_16x16x32_bf16 v[200:203], v[{40+4*ks}:{43+4*ks}], v[{100+4*ks}:{103+4*ks}], {c}")
for j in range(3):
    for ks in range(6):
        d=204+4*j
        c = "0" if ks==0 else f"v[{d}:{d+3}]"
        e(f"v_mfma_f32_16x16x32_bf16 v[{d}:{d+3}], v[{56+4*ks}:{59+4*ks}], v[{116+24*j+4*ks}:{119+24*j+4*ks}], {c}")
e("s_nop 7"); e("s_nop 7")
for r in range(4):
    e(f"v_mul_f32 v{220+r}, 0xbfb8aa3b, v{200+r}"); e(f"v_exp_f32 v{220+r}, v{220+r}"); e("s_nop 0")
    e(f"v_add_f32 v{220+r}, 1.0, v{220+r}"); e(f"v_rcp_f32 v{220+r}, v{220+r}"); e("s_nop 0")
    for j in range(3): e(f"v_mul_f32 v{204+4*j+r}, v{204+4*j+r}, v{220+r}")
e("v_add_u32 v17, s3, v3"); e("v_lshlrev_b32 v17, 9, v17")
e("v_lshl_add_u32 v17, v2, 5, v17"); e("v_lshl_add_u32 v17, v4, 3, v17")
for p in range(4):
    b=200+4*p
    e(f"v_cvt_pk_bf16_f32 v22, v{b}, v{b+1}"); e(f"v_cvt_pk_bf16_f32 v23, v{b+2}, v{b+3}")
    e(f"buffer_store_dwordx2 v[22:23], v17, s[32:35], 0 offen offset:{p*128}")
    e("s_nop 1")
lab("L_m_end"); e("s_endpgm")

txt = hdr + "\n".join(out) + "\n.section .rodata,\"a\"\n.p2align 6\n" + kdesc("hist_kernel",32)+".p2align 6\n"+kdesc("scan_kernel",80)+".p2align 6\n"+kdesc("scatter_kernel",128)+".p2align 6\n"+kdesc("main_kernel",256)
open(sys.argv[1] if len(sys.argv)>1 else "standalone__tensor_product_equiv_equiformer__graph.s","w").write(txt)
```
